```python
import torch

def _softmax(x, axis=-1):
    return torch.softmax(x, dim=axis)
def _gelu(x):
    return torch.nn.functional.gelu(x, approximate="tanh")
def _silu(x):
    return torch.nn.functional.silu(x)
def _sigmoid(x):
    return torch.sigmoid(x)
def _layernorm(x, axis=-1, eps=1e-5):
    m = x.mean(dim=axis, keepdim=True)
    v = x.var(dim=axis, keepdim=True, unbiased=False)
    return (x - m) / torch.sqrt(v + eps)
def _scatter_add(tgt, idx, src, axis=0):
    return tgt.clone().index_add_(axis, idx, src)
def _segment_sum(src, seg, n):
    out = torch.zeros((n,) + src.shape[1:], dtype=src.dtype)
    return out.index_add_(0, seg, src)
def _pad(x, pw):
    flat = tuple(v for pair in reversed(pw) for v in pair)
    return torch.nn.functional.pad(x, flat)

kernel_name = 'standalone__gqa_block_cached__sampling'

def setup_inputs():

    _w = (lambda a: (lambda t: t.to(torch.bfloat16) if t.is_floating_point() else t)(torch.as_tensor(a)))
    B, Sq, D = 16, 1, 1024
    Hq, Hkv, Sk, Dh = 32, 4, 4096, 128
    assert Hq % Hkv == 0, (Hq, Hkv)
    return {
        "x": _w((lambda *s: torch.randn(*s, dtype=torch.bfloat16) * 0.8)(B, Sq, D)),
        "k_cache": _w((lambda *s: torch.randn(*s, dtype=torch.bfloat16) * 0.8)(B, Hkv, Sk, Dh)),
        "v_cache": _w((lambda *s: torch.randn(*s, dtype=torch.bfloat16) * 0.05)(B, Hkv, Sk, Dh)),
        "wq": _w((lambda *s: torch.randn(*s, dtype=torch.bfloat16) * 0.8)(D, Hq * Dh) * (D ** -0.5)),
        "wo": _w((lambda *s: torch.randn(*s, dtype=torch.bfloat16) * 0.05)(Hq * Dh, D) * ((Hq * Dh) ** -0.5)),
    }

def reference(x, k_cache, v_cache, wq, wo):
    B, Sq, D = x.shape
    Hq, Dh = 32, 128
    Hkv = k_cache.shape[1]
    rep = Hq // Hkv
    q = (lambda x, *d: x.permute(*d))((x @ wq).reshape(B, Sq, Hq, Dh), 0, 2, 1, 3)
    k = (lambda x, n, axis: torch.repeat_interleave(x, n, dim=axis))(k_cache, rep, axis=1)
    v = (lambda x, n, axis: torch.repeat_interleave(x, n, dim=axis))(v_cache, rep, axis=1)
    scores = torch.einsum("bhqd,bhkd->bhqk", q, k) * (Dh ** -0.5)
    p = _softmax(scores, axis=-1)
    o = torch.einsum("bhqk,bhkd->bhqd", p, v)
    return (lambda x, *d: x.permute(*d))(o, 0, 2, 1, 3).reshape(B, Sq, Hq * Dh) @ wo
```

```python
import sys, argparse, math

KN = "standalone__gqa_block_cached__sampling_kernel"
HEADER = """; Kernarg layout for this problem (64 bytes, ptrs only, base s[0:1]):
"""

QP_OFF = 0
ML_OFF = 1 << 20
OP_OFF = 2 << 20
PO_OFF = 3 << 20
STAMP_OFF = 128 << 20

L_RED = 0
L_Q = 8 * 4352
L_CNT = L_Q + 8 * 272
L_WQ = L_CNT + 128
L_WO = L_WQ
L_RED2 = L_WQ
LDS_BYTES = L_WQ + 32768

class Gen:
    def __init__(s, o):
        s.o = o; s.L = []; s.ops = []
        s.nlab = 0
    def A(s, t):
        for x in t.split("\n"): s.L.append("    " + x.strip() if not x.strip().endswith(":") else x.strip())
    def C(s, t): s.L.append("    ; " + t)
    def vm(s, t, tag, throttle=True):
        if throttle and len(s.ops) >= s.o.depth:
            s.wait_n(s.o.depth - 1)
        s.A(t); s.ops.append(tag)
    def wait_n(s, n):
        if len(s.ops) > n:
            s.A("s_waitcnt vmcnt(%d)" % n); s.ops = s.ops[len(s.ops) - n:] if n else []
    def wait_tag(s, tag):
        idx = [i for i, t in enumerate(s.ops) if t == tag]
        if idx: s.wait_n(len(s.ops) - 1 - idx[-1])
    def stamp(s, k):
        if s.o.stamps: s.A("s_memrealtime s[%d:%d]" % (80 + 2 * k, 81 + 2 * k))

def gen(o):
    G = Gen(o); A = G.A; C = G.C
    B = [16, 48, 80, 112, 144]
    S = 176; ACC = 208; Q = 240
    P = B[3]; T = B[3] + 16
    SRD = dict(K=20, V=24, WQ=28, WO=32, WS=36, X=40, OUT=44, DBG=48)
    def srd(n): return "s[%d:%d]" % (SRD[n], SRD[n] + 3)
    NT = "nt" if o.nt else ""
    SC = o.sc
    G.stamp(0)
    dsave = o.depth
    o.depth = max(o.depth, o.pre)
    A("s_cmp_ge_u32 s2, 256\ns_cbranch_scc1 L_end")
    A("s_load_dwordx16 s[4:19], s[0:1], 0")
    A("v_lshrrev_b32 v4, 6, v0\nv_and_b32 v1, 63, v0")
    A("v_and_b32 v5, 15, v1            ; n\nv_readfirstlane_b32 s3, v4\nv_lshrrev_b32 v6, 4, v1         ; g")
    C("roles: attention (pair s62, split s63); q-proj (cb, ks); out-proj (h s64, ns s65)")
    if o.map == "adj":
        A("s_lshr_b32 s62, s2, 2\ns_and_b32 s63, s2, 3")
    else:
        A("s_and_b32 s62, s2, 63\ns_lshr_b32 s63, s2, 6")
    A("s_and_b32 s64, s2, 31\ns_lshr_b32 s65, s2, 5")
    C("wq DMA voffset v7 = (l>>3)*8192 + (l&7)*16 ; soffset s66 = (ks*256+32w)*8192 + cb*128")
    A("v_lshrrev_b32 v8, 3, v1\nv_and_b32 v9, 7, v1\nv_lshlrev_b32 v9, 4, v9\nv_lshl_add_u32 v7, v8, 13, v9")
    A("s_lshr_b32 s67, s2, 6          ; ks\ns_lshl_b32 s66, s67, 21\ns_lshl_b32 s68, s3, 18\ns_add_u32 s66, s66, s68\ns_and_b32 s68, s2, 63          ; cb\ns_lshl_b32 s69, s68, 7\ns_add_u32 s66, s66, s69")
    C("x voffset v10 = n*2048 + g*16 ; soffset s69 = ks*512 + w*64")
    A("v_lshlrev_b32 v10, 4, v6\nv_lshl_add_u32 v10, v5, 11, v10\ns_lshl_b32 s69, s67, 9\ns_lshl_b32 s70, s3, 6\ns_add_u32 s69, s69, s70")
    C("K voffset v2 = key*256 + (2g+c)*16, key = 4*(a&1) + (a>>1), a = n>>1, c = n&1 ; V voffset v3 = l*16")
    A("v_bfe_u32 v11, v5, 1, 1\nv_lshlrev_b32 v11, 2, v11\nv_lshrrev_b32 v12, 2, v5\nv_add_u32 v11, v11, v12\nv_lshlrev_b32 v2, 8, v11")
    A("v_and_b32 v11, 1, v5\nv_lshl_add_u32 v11, v6, 1, v11\nv_lshl_add_u32 v2, v11, 4, v2\nv_lshlrev_b32 v3, 4, v1")
    C("per-wave K/V base s70 = pair*1MiB + s*256KiB + w*32KiB ; unit order rotated per wave")
    A("s_lshl_b32 s70, s62, 20\ns_lshl_b32 s71, s63, 18\ns_add_u32 s70, s70, s71\ns_lshl_b32 s71, s3, 15\ns_add_u32 s70, s70, s71")
    A("s_lshr_b32 s71, s2, 3\ns_add_u32 s71, s71, s3          ; rot\ns_bfe_u32 s72, s71, 0x10002\ns_lshl_b32 s72, s72, 12\ns_add_u32 s70, s70, s72")
    for u in range(4):
        A("s_add_u32 s72, s71, %d\ns_and_b32 s72, s72, 3\ns_lshl_b32 s72, s72, 13\ns_add_u32 s%d, s70, s72\ns_xor_b32 s%d, s%d, 0x1000" % (u, 52 + 2 * u, 53 + 2 * u, 52 + 2 * u))
    A("s_lshl_b32 s73, s3, 12          ; w*4096")
    A("s_mov_b32 s%d, 0x800000\ns_mov_b32 s%d, 0x20000" % (SRD['WQ'] + 2, SRD['WQ'] + 3))
    A("s_mov_b32 s%d, 0x8000\ns_mov_b32 s%d, 0x20000" % (SRD['X'] + 2, SRD['X'] + 3))
    A("s_mov_b32 s%d, 0x4000000\ns_mov_b32 s%d, 0x20000" % (SRD['K'] + 2, SRD['K'] + 3))
    A("s_add_u32 m0, s73, %d" % L_WQ)
    A("s_waitcnt lgkmcnt(0)")
    A("s_mov_b32 s%d, s10\ns_mov_b32 s%d, s11" % (SRD['WQ'], SRD['WQ'] + 1))
    for j in range(4):
        if j: A("s_add_u32 m0, s73, %d\ns_add_u32 s66, s66, 0x10000" % (L_WQ + j * 1024))
        G.vm("buffer_load_dwordx4 v7, %s, s66 offen %s lds" % (srd('WQ'), NT), "WQ")
    A("s_mov_b32 s%d, s4\ns_mov_b32 s%d, s5" % (SRD['X'], SRD['X'] + 1))
    G.vm("buffer_load_dwordx4 v[%d:%d], v10, %s, s69 offen" % (S, S + 3, srd('X')), "WQ")
    A("s_mov_b32 s%d, s6\ns_mov_b32 s%d, s7" % (SRD['K'], SRD['K'] + 1))
    def kload(u, buf, lo=0, hi=8):
        for e in range(lo, hi):
            gu, jj = e >> 1, e & 1
            so = 52 + 2 * u + (gu >> 1)
            G.vm("buffer_load_dwordx4 v[%d:%d], v2, %s, s%d offen offset:%d %s" % (buf + 4 * e, buf + 4 * e + 3, srd('K'), so, (gu & 1) * 2048 + jj * 128, NT), "K%d" % u)
    def vload(u, buf, lo=0, hi=8):
        for e in range(lo, hi):
            so = 52 + 2 * u + (e >> 2)
            G.vm("buffer_load_dwordx4 v[%d:%d], v3, %s, s%d offen offset:%d %s" % (buf + 4 * e, buf + 4 * e + 3, srd('V'), so, (e & 3) * 1024, NT), "V%d" % u)
    kload(0, B[0], 0, 3)
    C("remaining descriptors")
    for n, p, sz in (("V", 8, 0x4000000), ("WO", 12, 0x800000), ("OUT", 14, 0x8000), ("DBG", 16, 0x100), ("WS", 18, 0x10000000)):
        A("s_mov_b32 s%d, s%d\ns_mov_b32 s%d, s%d\ns_mov_b32 s%d, 0x%x\ns_mov_b32 s%d, 0x20000" % (SRD[n], p, SRD[n] + 1, p + 1, SRD[n] + 2, sz, SRD[n] + 3))
    A("s_mov_b32 s60, 0x05040100\ns_mov_b32 s61, 0x07060302")
    C("hand-off slot addresses: OP store v12 (+s74), PO store v13 (+s75), ML store v14 (+s76)")
    A("s_and_b32 s72, s62, 3\ns_lshl_b32 s72, s72, 3\ns_add_u32 s72, s72, s3\ns_lshl_b32 s74, s72, 14\ns_lshl_b32 s72, s63, 12\ns_add_u32 s74, s74, s72\ns_lshr_b32 s72, s62, 2\ns_lshl_b32 s72, s72, 8\ns_add_u32 s74, s74, s72\ns_add_u32 s74, s74, 0x%x" % OP_OFF)
    A("v_lshlrev_b32 v12, 2, v1")
    A("s_lshl_b32 s75, s65, 3\ns_add_u32 s75, s75, s3\ns_lshl_b32 s75, s75, 15\ns_lshl_b32 s72, s64, 8\ns_add_u32 s75, s75, s72\ns_add_u32 s75, s75, 0x%x" % PO_OFF)
    A("v_lshrrev_b32 v13, 2, v5\nv_lshlrev_b32 v13, 13, v13\nv_and_b32 v11, 3, v5\nv_lshl_add_u32 v13, v11, 6, v13\nv_lshl_add_u32 v13, v6, 4, v13")
    A("s_lshl_b32 s77, s62, 11\ns_add_u32 s77, s77, 0x%x\ns_lshl_b32 s72, s63, 9\ns_add_u32 s76, s77, s72\ns_lshl_b32 s72, s3, 6\ns_add_u32 s76, s76, s72" % ML_OFF)
    A("v_lshlrev_b32 v14, 3, v1")
    C("mark this wave's hand-off slots empty (all-ones), zero the LDS arrival counter")
    A("v_mov_b32 v248, -1\nv_mov_b32 v249, -1\nv_mov_b32 v250, -1\nv_mov_b32 v251, -1\nv_mov_b32 v252, 0\nv_mov_b32 v253, 0x%x" % L_CNT)
    A("ds_write_b32 v253, v252")
    G.vm("buffer_store_dword v248, v12, %s, s74 offen %s" % (srd('WS'), SC), "CLR", throttle=False)
    G.vm("buffer_store_dwordx4 v[248:251], v13, %s, s75 offen %s" % (srd('WS'), SC), "CLR", throttle=False)
    A("s_mov_b64 exec, 0xff")
    G.vm("buffer_store_dwordx2 v[248:249], v14, %s, s76 offen %s" % (srd('WS'), SC), "CLR", throttle=False)
    A("s_mov_b64 exec, -1")
    C("LDS addresses: transpose-read v8, q-reduce write v9, q-reduce read v10")
    A("v_lshrrev_b32 v8, 2, v5\nv_lshl_add_u32 v8, v6, 3, v8\nv_lshlrev_b32 v8, 7, v8\nv_and_b32 v11, 3, v5\nv_lshl_add_u32 v8, v11, 3, v8\nv_add_u32 v8, s73, v8")
    A("s_mul_i32 s72, s3, 4352\nv_mul_u32_u24 v9, 272, v5\nv_lshl_add_u32 v9, v6, 4, v9\nv_add_u32 v9, s72, v9")
    A("s_mul_i32 s72, s3, 544\nv_lshrrev_b32 v11, 5, v1\nv_mul_u32_u24 v10, 272, v11\nv_and_b32 v15, 31, v1\nv_lshl_add_u32 v10, v15, 3, v10\nv_add_u32 v10, s72, v10")
    C("QP store v15 = (l>>5)*16384 + (l&31)*8 ; s78 = ks*256KiB + 2w*16KiB + cb*256")
    A("v_lshlrev_b32 v15, 3, v15\nv_lshl_add_u32 v15, v11, 14, v15")
    A("s_lshl_b32 s78, s67, 18\ns_lshl_b32 s72, s3, 15\ns_add_u32 s78, s78, s72\ns_lshl_b32 s72, s68, 8\ns_add_u32 s78, s78, s72")
    kload(0, B[0], 3, 8)
    o.depth = dsave
    C("---- q projection partial: [16 x 256] x [256 x 64] ----")
    G.wait_tag("WQ")
    G.stamp(2)
    F = S + 4
    for t in range(4):
        for hh in range(2):
            A("ds_read_b64_tr_b16 v[%d:%d], v8 offset:%d" % (F + 4 * t + 2 * hh, F + 4 * t + 2 * hh + 1, L_WQ + hh * 512 + t * 32))
    for t in range(4):
        A("s_waitcnt lgkmcnt(%d)" % (6 - 2 * t))
        A("v_mfma_f32_16x16x32_bf16 v[%d:%d], v[%d:%d], v[%d:%d], 0" % (ACC + 4 * t, ACC + 4 * t + 3, F + 4 * t, F + 4 * t + 3, S, S + 3))
    A("s_nop 7")
    for t in range(4):
        A("ds_write_b128 v9, v[%d:%d] offset:%d" % (ACC + 4 * t, ACC + 4 * t + 3, L_RED + t * 64))
    A("s_waitcnt lgkmcnt(0)\ns_barrier")
    R = ACC + 16
    for w in range(8):
        A("ds_read_b64 v[%d:%d], v10 offset:%d" % (R + 2 * w, R + 2 * w + 1, L_RED + w * 4352))
    def sum8(R):
        A("s_waitcnt lgkmcnt(4)")
        for k in range(2): A("v_add_f32 v%d, v%d, v%d\nv_add_f32 v%d, v%d, v%d" % (R + k, R + k, R + 2 + k, R + 4 + k, R + 4 + k, R + 6 + k))
        A("s_waitcnt lgkmcnt(0)")
        for k in range(2): A("v_add_f32 v%d, v%d, v%d\nv_add_f32 v%d, v%d, v%d" % (R + 8 + k, R + 8 + k, R + 10 + k, R + 12 + k, R + 12 + k, R + 14 + k))
        for k in range(2): A("v_add_f32 v%d, v%d, v%d\nv_add_f32 v%d, v%d, v%d" % (R + k, R + k, R + 4 + k, R + 8 + k, R + 8 + k, R + 12 + k))
        for k in range(2): A("v_add_f32 v%d, v%d, v%d" % (R + k, R + k, R + 8 + k))
    sum8(R)
    G.vm("buffer_store_dwordx2 v[%d:%d], v15, %s, s78 offen %s" % (R, R + 1, srd('WS'), SC), "QPS", throttle=False)
    kload(1, B[1])
    G.wait_tag("QPS")
    C("arrival: the last wave of the workgroup adds to the launch-wide counter; the last workgroup raises the go flag")
    A("v_mov_b32 v252, 1\nv_mov_b32 v255, 0\ns_mov_b64 exec, 1\nds_add_rtn_u32 v254, v253, v252\ns_waitcnt lgkmcnt(0)\nv_readfirstlane_b32 s72, v254")
    A("s_cmp_lg_u32 s72, 7\ns_cbranch_scc1 L_noarr")
    A("v_mov_b32 v255, 1\nbuffer_atomic_add v255, off, %s, 0 sc0 sc1" % srd('DBG'))
    A("L_noarr:\ns_mov_b64 exec, -1")
    G.stamp(3)
    G.ops.append("ARR")
    n0 = min(o.depth, 8)
    G.ops.pop()
    kload(2, B[2], 0, n0)
    A("s_waitcnt vmcnt(%d)" % n0 if n0 < o.depth else "s_nop 0")
    A("v_readfirstlane_b32 s72, v255\ns_cmp_lg_u32 s72, 255\ns_cbranch_scc1 L_nogo")
    A("s_mov_b64 exec, 1\nbuffer_store_dword v252, off, %s, 0 offset:128 sc1\ns_mov_b64 exec, -1" % srd('DBG'))
    A("L_nogo:")
    kload(2, B[2], n0, 8)
    kload(3, B[3], 0, o.pollat)
    G.vm("buffer_load_dword v254, off, %s, 0 offset:128 sc1" % srd('DBG'), "POLL")
    kload(3, B[3], o.pollat, 8)
    vload(0, B[4], 0, o.pollat)
    G.wait_tag("POLL")
    A("s_mov_b32 s72, 0")
    A("L_poll0:\nv_cmp_ne_u32 vcc, 1, v254\ns_cbranch_vccz L_poll0_done")
    A("s_add_u32 s72, s72, 1\ns_cmp_gt_u32 s72, %d\ns_cbranch_scc1 L_poll0_done" % o.spin)
    A("s_sleep 4\nbuffer_load_dword v254, off, %s, 0 offset:128 sc1\ns_waitcnt vmcnt(0)\ns_branch L_poll0" % srd('DBG'))
    A("L_poll0_done:")
    G.stamp(4)
    C("gather q for head w of this group: 4 K-split partials")
    A("s_lshr_b32 s72, s62, 2\ns_lshl_b32 s79, s72, 14\ns_and_b32 s72, s62, 3\ns_lshl_b32 s72, s72, 12\ns_add_u32 s79, s79, s72\ns_lshl_b32 s72, s3, 9\ns_add_u32 s79, s79, s72")
    for ks in range(4):
        G.vm("buffer_load_dwordx2 v[%d:%d], v14, %s, s79 offen sc1" % (S + 2 * ks, S + 2 * ks + 1, srd('WS')), "QPL", throttle=False)
        if ks < 3: A("s_add_u32 s79, s79, 0x40000")
    vload(0, B[4], o.pollat, 8)
    G.wait_tag("QPL")
    A("v_add_f32 v%d, v%d, v%d\nv_add_f32 v%d, v%d, v%d\nv_add_f32 v%d, v%d, v%d\nv_add_f32 v%d, v%d, v%d" % (S, S, S + 2, S + 1, S + 1, S + 3, S + 4, S + 4, S + 6, S + 5, S + 5, S + 7))
    A("v_add_f32 v%d, v%d, v%d\nv_add_f32 v%d, v%d, v%d" % (S, S, S + 4, S + 1, S + 1, S + 5))
    A("s_mul_i32 s72, s3, 272\nv_add_u32 v11, s72, v12\nv_cvt_pk_bf16_f32 v%d, v%d, v%d" % (S, S, S + 1))
    A("ds_write_b32 v11, v%d offset:%d" % (S, L_Q))
    A("v_and_b32 v11, 7, v5\nv_mul_u32_u24 v11, 272, v11\nv_lshrrev_b32 v4, 3, v5\nv_lshl_add_u32 v4, v6, 1, v4\nv_lshl_add_u32 v11, v4, 4, v11")
    A("s_waitcnt lgkmcnt(0)\ns_barrier")
    A("ds_read_b128 v[%d:%d], v11 offset:%d\nds_read_b128 v[%d:%d], v11 offset:%d" % (Q, Q + 3, L_Q, Q + 4, Q + 7, L_Q + 128))
    A("s_waitcnt lgkmcnt(0)")
    C("---- scores ----")
    G.wait_tag("K3")
    def qk(u):
        D = ACC + 16 * (u & 1)
        for gu in range(4):
            k0 = B[u] + 8 * gu
            A("v_mfma_f32_16x16x32_bf16 v[%d:%d], v[%d:%d], v[%d:%d], 0" % (D + 4 * gu, D + 4 * gu + 3, k0, k0 + 3, Q, Q + 3))
        for gu in range(4):
            k0 = B[u] + 8 * gu + 4
            A("v_mfma_f32_16x16x32_bf16 v[%d:%d], v[%d:%d], v[%d:%d], v[%d:%d]" % (D + 4 * gu, D + 4 * gu + 3, k0, k0 + 3, Q + 4, Q + 7, D + 4 * gu, D + 4 * gu + 3))
    def qkred(u):
        D = ACC + 16 * (u & 1)
        for gu in range(4):
            for t in range(2):
                A("v_add_f32_dpp v%d, v%d, v%d row_ror:8 row_mask:0xf bank_mask:0xf" % (S + 8 * u + 2 * gu + t, D + 4 * gu + 2 * t + 1, D + 4 * gu + 2 * t))
    qk(0); qk(1); qkred(0); qk(2); qkred(1); qk(3); qkred(2)
    vload(1, B[0], 0, 4)
    qkred(3)
    G.stamp(5)
    C("wave max per head")
    M, M2 = 248, 249
    A("v_max3_f32 v%d, v%d, v%d, v%d" % (M, S, S + 1, S + 2))
    A("v_max3_f32 v%d, v%d, v%d, v%d" % (M2, S + 3, S + 4, S + 5))
    i = 6
    while i + 3 < 32:
        A("v_max3_f32 v%d, v%d, v%d, v%d\nv_max3_f32 v%d, v%d, v%d, v%d" % (M, M, S + i, S + i + 1, M2, M2, S + i + 2, S + i + 3)); i += 4
    A("v_max3_f32 v%d, v%d, v%d, v%d" % (M, M, S + 30, S + 31))
    A("v_max_f32 v%d, v%d, v%d" % (M, M, M2))
    def xred(op, r, tmp, x8=False):
        if x8:
            A("s_nop 1\n%s_dpp v%d, v%d, v%d row_ror:8 row_mask:0xf bank_mask:0xf" % (op, r, r, r))
        for sw in ("v_permlane16_swap_b32", "v_permlane32_swap_b32"):
            A("v_mov_b32 v%d, v%d\ns_nop 1\n%s v%d, v%d\ns_nop 1\n%s v%d, v%d, v%d" % (tmp, r, sw, r, tmp, op, r, r, tmp))
    xred("v_max_f32", M, M2)
    c = math.log2(math.e) / math.sqrt(128.0)
    import struct
    cbits = struct.unpack("<I", struct.pack("<f", c))[0]
    A("s_mov_b32 s72, 0x%08x\nv_mul_f32 v%d, s72, v%d" % (cbits, M, M))
    vload(1, B[0], 4, 8)
    for i in range(32): A("v_fma_f32 v%d, v%d, s72, -v%d" % (S + i, S + i, M))
    for i in range(32): A("v_exp_f32 v%d, v%d" % (S + i, S + i))
    Lr = 249
    A("v_add_f32 v%d, v%d, v%d\nv_add_f32 v250, v%d, v%d" % (Lr, S, S + 1, S + 2, S + 3))
    for i in range(4, 32, 2): A("v_add_f32 v%d, v%d, v%d\nv_add_f32 v250, v250, v%d" % (Lr, Lr, S + i, S + i + 1))
    A("v_add_f32 v%d, v%d, v250" % (Lr, Lr))
    xred("v_add_f32", Lr, 250)
    A("s_mov_b64 exec, 0xff")
    G.vm("buffer_store_dwordx2 v[248:249], v14, %s, s76 offen %s" % (srd('WS'), SC), "MLS", throttle=False)
    A("s_mov_b64 exec, -1")
    C("wo DMA voffset v7, soffset s66")
    A("v_lshrrev_b32 v4, 5, v1\nv_lshlrev_b32 v4, 16, v4\nv_bfe_u32 v7, v1, 3, 2\nv_lshl_add_u32 v4, v7, 14, v4\nv_and_b32 v7, 7, v1\nv_lshl_add_u32 v7, v7, 4, v4")
    A("s_lshl_b32 s66, s64, 18\ns_and_b32 s67, s3, 3\ns_lshl_b32 s72, s67, 12\ns_add_u32 s66, s66, s72\ns_lshl_b32 s72, s65, 8\ns_add_u32 s66, s66, s72\ns_lshr_b32 s68, s3, 2\ns_lshl_b32 s72, s68, 7\ns_add_u32 s66, s66, s72")
    def woload():
        for k in range(4):
            A("s_add_u32 m0, s73, %d\ns_add_u32 s72, s66, %d" % (L_WO + k * 1024, (64 * (k & 1) + (k >> 1)) * 2048))
            G.vm("buffer_load_dwordx4 v7, %s, s72 offen %s lds" % (srd('WO'), NT), "WO")
    def mlload(thr):
        for i in range(4):
            t = "buffer_load_dwordx2 v[%d:%d], v14, %s, s77 offen offset:%d sc1" % (T + 2 * i, T + 2 * i + 1, srd('WS'), i * 512)
            if thr: G.vm(t, "MLL", throttle=False)
            else: A(t)
    vload(2, B[1])
    if o.wo == "mid": woload()
    mlload(True)
    vload(3, B[2])
    if o.wo == "last": woload()
    G.wait_tag("MLL")
    A("s_mov_b32 s72, 0")
    A("L_poll1:")
    A("v_cmp_eq_u32 vcc, -1, v%d" % (T + 1))
    for i in range(1, 4): A("v_cmp_eq_u32 s[70:71], -1, v%d\ns_or_b64 vcc, vcc, s[70:71]" % (T + 2 * i + 1))
    for i in range(0, 4): A("v_cmp_eq_u32 s[70:71], -1, v%d\ns_or_b64 vcc, vcc, s[70:71]" % (T + 2 * i))
    A("s_cbranch_vccz L_poll1_done")
    A("s_add_u32 s72, s72, 1\ns_cmp_gt_u32 s72, %d\ns_cbranch_scc1 L_poll1_done\ns_sleep 2" % o.spin)
    mlload(False)
    A("s_waitcnt vmcnt(0)\ns_branch L_poll1\nL_poll1_done:")
    C("global max / sum over the 32 waves that share this (batch, kv head)")
    A("v_max3_f32 v250, v%d, v%d, v%d\nv_max_f32 v250, v250, v%d" % (T, T + 2, T + 4, T + 6))
    xred("v_max_f32", 250, 251, x8=True)
    for i in range(4): A("v_sub_f32 v%d, v%d, v250" % (T + 2 * i, T + 2 * i))
    A("v_sub_f32 v248, v248, v250")
    for i in range(4): A("v_exp_f32 v%d, v%d" % (T + 2 * i, T + 2 * i))
    A("v_exp_f32 v248, v248")
    A("v_mul_f32 v251, v%d, v%d" % (T, T + 1))
    for i in range(1, 4): A("v_fmac_f32 v251, v%d, v%d" % (T + 2 * i, T + 2 * i + 1))
    xred("v_add_f32", 251, 250, x8=True)
    A("v_rcp_f32 v251, v251\ns_nop 0\nv_mul_f32 v248, v248, v251")
    for i in range(32): A("v_mul_f32 v%d, v248, v%d" % (S + i, S + i))
    for i in range(16): A("v_cvt_pk_bf16_f32 v%d, v%d, v%d" % (P + i, S + 2 * i, S + 2 * i + 1))
    G.stamp(6)
    C("---- O^T += V^T P^T ----")
    def pv(u, buf, first):
        G.wait_tag("V%d" % u)
        def perms(j):
            t0 = T + 4 * (j & 3)
            for i in range(4):
                A("v_perm_b32 v%d, v%d, v%d, s%d" % (t0 + i, buf + 4 * (2 * i + 1) + (j >> 1), buf + 4 * (2 * i) + (j >> 1), 60 + (j & 1)))
        def mf(j):
            t0 = T + 4 * (j & 3)
            cs = "0" if first else "v[%d:%d]" % (ACC + 4 * j, ACC + 4 * j + 3)
            A("v_mfma_f32_16x16x32_bf16 v[%d:%d], v[%d:%d], v[%d:%d], %s" % (ACC + 4 * j, ACC + 4 * j + 3, t0, t0 + 3, P + 4 * u, P + 4 * u + 3, cs))
        perms(0)
        for j in range(8):
            if j < 7: perms(j + 1)
            else: A("s_nop 1")
            mf(j)
    C("LDS addresses for the tail: o-reduce write v9, read v10")
    A("s_mul_i32 s72, s3, 4352\nv_mul_u32_u24 v9, 528, v5\nv_lshl_add_u32 v9, v6, 4, v9\nv_add_u32 v9, s72, v9")
    A("s_mul_i32 s72, s3, 528\nv_add_u32 v10, s72, v14")
    C("OP load v11 (+s79); out-reduce write v4, read v15")
    A("v_lshlrev_b32 v11, 4, v6\nv_lshl_add_u32 v11, v5, 8, v11\ns_lshl_b32 s79, s64, 14\ns_lshl_b32 s72, s67, 6\ns_add_u32 s79, s79, s72\ns_add_u32 s79, s79, 0x%x" % OP_OFF)
    A("s_add_u32 s69, s79, 0x2000")
    A("v_add_u32 v4, s73, v3\ns_lshl_b32 s72, s68, 14\ns_lshl_b32 s70, s67, 10\ns_add_u32 s72, s72, s70\nv_add_u32 v15, s72, v3")
    pv(0, B[4], True); pv(1, B[0], False); pv(2, B[1], False)
    WF = B[4]
    def woread():
        G.wait_tag("WO")
        for t in range(4):
            for hh in range(2):
                A("ds_read_b64_tr_b16 v[%d:%d], v8 offset:%d" % (WF + 4 * t + 2 * hh, WF + 4 * t + 2 * hh + 1, L_WO + hh * 512 + t * 32))
    if o.wo == "mid": woread()
    pv(3, B[2], False)
    G.stamp(7)
    A("s_mov_b32 exec_lo, 0x00ff00ff\ns_mov_b32 exec_hi, 0x00ff00ff")
    for j in range(8):
        if j == 7: A("s_nop 0")
        A("ds_write_b128 v9, v[%d:%d] offset:%d" % (ACC + 4 * j, ACC + 4 * j + 3, L_RED + j * 64))
    A("s_mov_b64 exec, -1\ns_waitcnt lgkmcnt(0)\ns_barrier")
    R = S
    for w in range(8):
        A("ds_read_b64 v[%d:%d], v10 offset:%d" % (R + 2 * w, R + 2 * w + 1, L_RED + w * 4352))
    sum8(R)
    A("v_cvt_pk_bf16_f32 v%d, v%d, v%d" % (R, R, R + 1))
    G.vm("buffer_store_dword v%d, v12, %s, s74 offen %s" % (R, srd('WS'), SC), "OPS", throttle=False)
    if o.wo == "last": woread()
    C("---- output projection, stage 1: head h, 128 columns ----")
    OF = B[0]
    A("s_mov_b32 s72, 0")
    A("L_poll2:")
    for s_ in range(4):
        A("buffer_load_dwordx4 v[%d:%d], v11, %s, s%d offen offset:%d sc1" % (OF + 4 * s_, OF + 4 * s_ + 3, srd('WS'), 79 if s_ < 2 else 69, 0) if False else
          "buffer_load_dwordx4 v[%d:%d], v11, %s, s%d offen sc1" % (OF + 4 * s_, OF + 4 * s_ + 3, srd('WS'), 79) + ("\ns_add_u32 s79, s79, 0x1000" if s_ < 3 else "\ns_sub_u32 s79, s79, 0x3000"))
    A("s_waitcnt vmcnt(0)")
    def allvalid(base, n, tmp):
        A("v_max3_u32 v%d, v%d, v%d, v%d" % (tmp, base, base + 1, base + 2))
        A("v_max3_u32 v%d, v%d, v%d, v%d" % (tmp + 1, base + 3, base + 4, base + 5))
        i = 6
        while i + 3 < n:
            A("v_max3_u32 v%d, v%d, v%d, v%d\nv_max3_u32 v%d, v%d, v%d, v%d" % (tmp, tmp, base + i, base + i + 1, tmp + 1, tmp + 1, base + i + 2, base + i + 3)); i += 4
        A("v_max3_u32 v%d, v%d, v%d, v%d" % (tmp, tmp, base + n - 2, base + n - 1))
        A("v_max_u32 v%d, v%d, v%d\nv_cmp_eq_u32 vcc, -1, v%d" % (tmp, tmp, tmp + 1, tmp))
    allvalid(OF, 16, 250)
    A("s_cbranch_vccz L_poll2_done")
    A("s_add_u32 s72, s72, 1\ns_cmp_gt_u32 s72, %d\ns_cbranch_scc1 L_poll2_done" % o.spin)
    if o.sleep2: A("s_sleep %d" % o.sleep2)
    A("s_branch L_poll2\nL_poll2_done:")
    G.ops = []
    if o.stamps: A("s_memrealtime s[96:97]")
    A("s_waitcnt lgkmcnt(0)")
    for s_ in range(4):
        for t in range(4):
            cs = "0" if s_ == 0 else "v[%d:%d]" % (ACC + 4 * t, ACC + 4 * t + 3)
            A("v_mfma_f32_16x16x32_bf16 v[%d:%d], v[%d:%d], v[%d:%d], %s" % (ACC + 4 * t, ACC + 4 * t + 3, WF + 4 * t, WF + 4 * t + 3, OF + 4 * s_, OF + 4 * s_ + 3, cs))
    A("s_nop 4")
    for t in range(4):
        A("ds_write_b128 v4, v[%d:%d] offset:%d" % (ACC + 4 * t, ACC + 4 * t + 3, L_RED2 + t * 1024))
        if t < 3: A("s_nop 0")
    A("s_waitcnt lgkmcnt(0)\ns_barrier")
    for j in range(4):
        A("ds_read_b128 v[%d:%d], v15 offset:%d" % (S + 4 * j, S + 4 * j + 3, L_RED2 + j * 4096))
    A("s_waitcnt lgkmcnt(2)")
    for k in range(4): A("v_add_f32 v%d, v%d, v%d" % (S + k, S + k, S + 4 + k))
    A("s_waitcnt lgkmcnt(0)")
    for k in range(4): A("v_add_f32 v%d, v%d, v%d" % (S + 8 + k, S + 8 + k, S + 12 + k))
    for k in range(4): A("v_add_f32 v%d, v%d, v%d" % (S + k, S + k, S + 8 + k))
    A("buffer_store_dwordx4 v[%d:%d], v13, %s, s75 offen %s" % (S, S + 3, srd('WS'), SC))
    A("s_cmp_lg_u32 s3, 0\ns_cbranch_scc1 L_end")
    C("---- stage 2 (wave 0): sum the 32 heads for 4 batches x 16 columns ----")
    A("s_lshl_b32 s79, s2, 13\ns_add_u32 s79, s79, 0x%x\ns_add_u32 s69, s79, 0x1000" % PO_OFF)
    A("s_and_b32 s70, s2, 3\ns_lshl_b32 s70, s70, 13\ns_lshr_b32 s71, s2, 2\ns_lshl_b32 s71, s71, 5\ns_add_u32 s70, s70, s71")
    A("v_lshrrev_b32 v4, 2, v5\nv_lshlrev_b32 v4, 11, v4\nv_and_b32 v7, 3, v5\nv_lshl_add_u32 v4, v7, 3, v4")
    FB = B[1]
    A("s_mov_b32 s72, 0\nL_poll3:")
    for k in range(8):
        A("buffer_load_dwordx4 v[%d:%d], v3, %s, s%d offen offset:%d sc1" % (FB + 4 * k, FB + 4 * k + 3, srd('WS'), 79 if k < 4 else 69, (k & 3) * 1024))
    A("s_waitcnt vmcnt(0)")
    allvalid(FB, 32, 250)
    A("s_cbranch_vccz L_poll3_done")
    A("s_add_u32 s72, s72, 1\ns_cmp_gt_u32 s72, %d\ns_cbranch_scc1 L_poll3_done" % o.spin)
    A("s_branch L_poll3\nL_poll3_done:")
    if o.stamps: A("s_memrealtime s[98:99]")
    for st in (16, 8, 4):
        for k in range(st): A("v_add_f32 v%d, v%d, v%d" % (FB + k, FB + k, FB + st + k))
    for sw in ("v_permlane16_swap_b32", "v_permlane32_swap_b32"):
        for k in range(4): A("v_mov_b32 v%d, v%d" % (FB + 4 + k, FB + k))
        A("s_nop 0")
        for k in range(4): A("%s v%d, v%d" % (sw, FB + k, FB + 4 + k))
        A("s_nop 0")
        for k in range(4): A("v_add_f32 v%d, v%d, v%d" % (FB + k, FB + k, FB + 4 + k))
    A("v_cvt_pk_bf16_f32 v%d, v%d, v%d\nv_cvt_pk_bf16_f32 v%d, v%d, v%d" % (FB, FB, FB + 1, FB + 1, FB + 2, FB + 3))
    A("s_mov_b64 exec, 0xffff")
    A("buffer_store_dwordx2 v[%d:%d], v4, %s, s70 offen %s" % (FB, FB + 1, srd('OUT'), o.outsc))
    if o.stamps:
        A("s_waitcnt vmcnt(0)\ns_memrealtime s[82:83]\ns_waitcnt lgkmcnt(0)\ns_mov_b64 exec, 1")
        A("s_lshl_b32 s72, s2, 7\ns_add_u32 s72, s72, 0x%x" % STAMP_OFF)
        A("s_getreg_b32 s100, hwreg(HW_REG_XCC_ID)\ns_mov_b32 s101, 0")
        for j in range(22): A("v_mov_b32 v%d, s%d" % (16 + j, 80 + j))
        for j in range(5): A("buffer_store_dwordx4 v[%d:%d], off, %s, s72 offset:%d" % (16 + 4 * j, 19 + 4 * j, srd('WS'), 16 * j))
        A("buffer_store_dwordx2 v[36:37], off, %s, s72 offset:120" % srd('WS'))
    A("L_end:\ns_endpgm")
    out = HEADER + "; @launch grid=(256,1,1) block=(512,1,1) lds=%d\n" % LDS_BYTES
    out += '.amdgcn_target "amdgcn-amd-amdhsa--gfx950"\n.text\n.globl %s\n.p2align 8\n.type %s,@function\n%s:\n' % (KN, KN, KN)
    out += "\n".join(G.L) + "\n"
    out += '.section .rodata,"a"\n.p2align 6\n.amdhsa_kernel %s\n  .amdhsa_next_free_vgpr 256\n  .amdhsa_next_free_sgpr 102\n  .amdhsa_accum_offset 256\n  .amdhsa_group_segment_fixed_size 0\n  .amdhsa_kernarg_size 64\n  .amdhsa_user_sgpr_count 2\n  .amdhsa_user_sgpr_kernarg_segment_ptr 1\n  .amdhsa_system_sgpr_workgroup_id_x 1\n  .amdhsa_float_denorm_mode_32 3\n.end_amdhsa_kernel\n' % KN
    return out

def parse(argv):
    ap = argparse.ArgumentParser()
    ap.add_argument("-o", default="/dev/stdout")
    ap.add_argument("--depth", type=int, default=8)
    ap.add_argument("--pre", type=int, default=16)
    ap.add_argument("--nt", type=int, default=1)
    ap.add_argument("--sc", default="sc1")
    ap.add_argument("--outsc", default="")
    ap.add_argument("--map", default="adj")
    ap.add_argument("--wo", default="last")
    ap.add_argument("--spin", type=int, default=200000)
    ap.add_argument("--sleep2", type=int, default=0)
    ap.add_argument("--pollat", type=int, default=0)
    ap.add_argument("--stamps", type=int, default=0)
    return ap.parse_args(argv)

if __name__ == "__main__":
    o = parse(sys.argv[1:])
    open(o.o, "w").write(gen(o))
```

```python
import sys, argparse, math

KN = "standalone__gqa_block_cached__sampling_kernel"
HEADER = """; Kernarg layout for this problem (64 bytes, ptrs only, base s[0:1]):
"""

QP_OFF = 0
ML_OFF = 1 << 20
OP_OFF = 2 << 20
PO_OFF = 3 << 20
STAMP_OFF = 128 << 20

L_RED = 0
L_Q = 8 * 4352
L_CNT = L_Q + 8 * 272
L_WQ = L_CNT + 128
L_WO = L_WQ
L_RED2 = L_WQ
LDS_BYTES = L_WQ + 32768

class Gen:
    def __init__(s, o):
        s.o = o; s.L = []; s.ops = []
        s.nlab = 0
    def A(s, t):
        for x in t.split("\n"): s.L.append("    " + x.strip() if not x.strip().endswith(":") else x.strip())
    def C(s, t): s.L.append("    ; " + t)
    def vm(s, t, tag, throttle=True):
        if throttle and len(s.ops) >= s.o.depth:
            s.wait_n(s.o.depth - 1)
        s.A(t); s.ops.append(tag)
    def wait_n(s, n):
        if len(s.ops) > n:
            s.A("s_waitcnt vmcnt(%d)" % n); s.ops = s.ops[len(s.ops) - n:] if n else []
    def wait_tag(s, tag):
        idx = [i for i, t in enumerate(s.ops) if t == tag]
        if idx: s.wait_n(len(s.ops) - 1 - idx[-1])
    def stamp(s, k):
        if s.o.stamps: s.A("s_memrealtime s[%d:%d]" % (80 + 2 * k, 81 + 2 * k))

def gen(o):
    G = Gen(o); A = G.A; C = G.C
    B = [16, 48, 80, 112, 144]
    S = 176; ACC = 208; Q = 240
    P = B[3]; T = B[3] + 16
    SRD = dict(K=20, V=24, WQ=28, WO=32, WS=36, X=40, OUT=44, DBG=48)
    def srd(n): return "s[%d:%d]" % (SRD[n], SRD[n] + 3)
    NT = "nt" if o.nt else ""
    SC = o.sc
    G.stamp(0)
    dsave = o.depth
    o.depth = max(o.depth, o.pre)
    A("s_cmp_ge_u32 s2, 256\ns_cbranch_scc1 L_end")
    A("s_load_dwordx16 s[4:19], s[0:1], 0")
    A("v_lshrrev_b32 v4, 6, v0\nv_and_b32 v1, 63, v0")
    A("v_and_b32 v5, 15, v1            ; n\nv_readfirstlane_b32 s3, v4\nv_lshrrev_b32 v6, 4, v1         ; g")
    C("roles: attention (pair s62, split s63); q-proj (cb, ks); out-proj (h s64, ns s65)")
    if o.map == "adj":
        A("s_lshr_b32 s62, s2, 2\ns_and_b32 s63, s2, 3")
    else:
        A("s_and_b32 s62, s2, 63\ns_lshr_b32 s63, s2, 6")
    A("s_and_b32 s64, s2, 31\ns_lshr_b32 s65, s2, 5")
    C("wq DMA voffset v7 = (l>>3)*8192 + (l&7)*16 ; soffset s66 = (ks*256+32w)*8192 + cb*128")
    A("v_lshrrev_b32 v8, 3, v1\nv_and_b32 v9, 7, v1\nv_lshlrev_b32 v9, 4, v9\nv_lshl_add_u32 v7, v8, 13, v9")
    A("s_lshr_b32 s67, s2, 6          ; ks\ns_lshl_b32 s66, s67, 21\ns_lshl_b32 s68, s3, 18\ns_add_u32 s66, s66, s68\ns_and_b32 s68, s2, 63          ; cb\ns_lshl_b32 s69, s68, 7\ns_add_u32 s66, s66, s69")
    C("x voffset v10 = n*2048 + g*16 ; soffset s69 = ks*512 + w*64")
    A("v_lshlrev_b32 v10, 4, v6\nv_lshl_add_u32 v10, v5, 11, v10\ns_lshl_b32 s69, s67, 9\ns_lshl_b32 s70, s3, 6\ns_add_u32 s69, s69, s70")
    C("K voffset v2 = key*256 + (2g+c)*16, key = 4*(a&1) + (a>>1), a = n>>1, c = n&1 ; V voffset v3 = l*16")
    A("v_bfe_u32 v11, v5, 1, 1\nv_lshlrev_b32 v11, 2, v11\nv_lshrrev_b32 v12, 2, v5\nv_add_u32 v11, v11, v12\nv_lshlrev_b32 v2, 8, v11")
    A("v_and_b32 v11, 1, v5\nv_lshl_add_u32 v11, v6, 1, v11\nv_lshl_add_u32 v2, v11, 4, v2\nv_lshlrev_b32 v3, 4, v1")
    C("per-wave K/V base s70 = pair*1MiB + s*256KiB + w*32KiB ; unit order rotated per wave")
    A("s_lshl_b32 s70, s62, 20\ns_lshl_b32 s71, s63, 18\ns_add_u32 s70, s70, s71\ns_lshl_b32 s71, s3, 15\ns_add_u32 s70, s70, s71")
    A("s_lshr_b32 s71, s2, 3\ns_add_u32 s71, s71, s3          ; rot\ns_bfe_u32 s72, s71, 0x10002\ns_lshl_b32 s72, s72, 12\ns_add_u32 s70, s70, s72")
    for u in range(4):
        A("s_add_u32 s72, s71, %d\ns_and_b32 s72, s72, 3\ns_lshl_b32 s72, s72, 13\ns_add_u32 s%d, s70, s72\ns_xor_b32 s%d, s%d, 0x1000" % (u, 52 + 2 * u, 53 + 2 * u, 52 + 2 * u))
    A("s_lshl_b32 s73, s3, 12          ; w*4096")
    A("s_mov_b32 s%d, 0x800000\ns_mov_b32 s%d, 0x20000" % (SRD['WQ'] + 2, SRD['WQ'] + 3))
    A("s_mov_b32 s%d, 0x8000\ns_mov_b32 s%d, 0x20000" % (SRD['X'] + 2, SRD['X'] + 3))
    A("s_mov_b32 s%d, 0x4000000\ns_mov_b32 s%d, 0x20000" % (SRD['K'] + 2, SRD['K'] + 3))
    A("s_add_u32 m0, s73, %d" % L_WQ)
    A("s_waitcnt lgkmcnt(0)")
    A("s_mov_b32 s%d, s10\ns_mov_b32 s%d, s11" % (SRD['WQ'], SRD['WQ'] + 1))
    for j in range(4):
        if j: A("s_add_u32 m0, s73, %d\ns_add_u32 s66, s66, 0x10000" % (L_WQ + j * 1024))
        G.vm("buffer_load_dwordx4 v7, %s, s66 offen %s lds" % (srd('WQ'), NT), "WQ")
    A("s_mov_b32 s%d, s4\ns_mov_b32 s%d, s5" % (SRD['X'], SRD['X'] + 1))
    G.vm("buffer_load_dwordx4 v[%d:%d], v10, %s, s69 offen" % (S, S + 3, srd('X')), "WQ")
    A("s_mov_b32 s%d, s6\ns_mov_b32 s%d, s7" % (SRD['K'], SRD['K'] + 1))
    def kload(u, buf, lo=0, hi=8):
        for e in range(lo, hi):
            gu, jj = e >> 1, e & 1
            so = 52 + 2 * u + (gu >> 1)
            G.vm("buffer_load_dwordx4 v[%d:%d], v2, %s, s%d offen offset:%d %s" % (buf + 4 * e, buf + 4 * e + 3, srd('K'), so, (gu & 1) * 2048 + jj * 128, NT), "K%d" % u)
    def vload(u, buf, lo=0, hi=8):
        for e in range(lo, hi):
            so = 52 + 2 * u + (e >> 2)
            G.vm("buffer_load_dwordx4 v[%d:%d], v3, %s, s%d offen offset:%d %s" % (buf + 4 * e, buf + 4 * e + 3, srd('V'), so, (e & 3) * 1024, NT), "V%d" % u)
    kload(0, B[0], 0, 3)
    C("remaining descriptors")
    for n, p, sz in (("V", 8, 0x4000000), ("WO", 12, 0x800000), ("OUT", 14, 0x8000), ("DBG", 16, 0x100), ("WS", 18, 0x10000000)):
        A("s_mov_b32 s%d, s%d\ns_mov_b32 s%d, s%d\ns_mov_b32 s%d, 0x%x\ns_mov_b32 s%d, 0x20000" % (SRD[n], p, SRD[n] + 1, p + 1, SRD[n] + 2, sz, SRD[n] + 3))
    A("s_mov_b32 s60, 0x05040100\ns_mov_b32 s61, 0x07060302")
    C("hand-off slot addresses: OP store v12 (+s74), PO store v13 (+s75), ML store v14 (+s76)")
    A("s_and_b32 s72, s62, 3\ns_lshl_b32 s72, s72, 3\ns_add_u32 s72, s72, s3\ns_lshl_b32 s74, s72, 14\ns_lshl_b32 s72, s63, 12\ns_add_u32 s74, s74, s72\ns_lshr_b32 s72, s62, 2\ns_lshl_b32 s72, s72, 8\ns_add_u32 s74, s74, s72\ns_add_u32 s74, s74, 0x%x" % OP_OFF)
    A("v_lshlrev_b32 v12, 2, v1")
    A("s_lshl_b32 s75, s65, 3\ns_add_u32 s75, s75, s3\ns_lshl_b32 s75, s75, 15\ns_lshl_b32 s72, s64, 8\ns_add_u32 s75, s75, s72\ns_add_u32 s75, s75, 0x%x" % PO_OFF)
    A("v_lshrrev_b32 v13, 2, v5\nv_lshlrev_b32 v13, 13, v13\nv_and_b32 v11, 3, v5\nv_lshl_add_u32 v13, v11, 6, v13\nv_lshl_add_u32 v13, v6, 4, v13")
    A("s_lshl_b32 s77, s62, 11\ns_add_u32 s77, s77, 0x%x\ns_lshl_b32 s72, s63, 9\ns_add_u32 s76, s77, s72\ns_lshl_b32 s72, s3, 6\ns_add_u32 s76, s76, s72" % ML_OFF)
    A("v_lshlrev_b32 v14, 3, v1")
    C("mark this wave's hand-off slots empty (all-ones), zero the LDS arrival counter")
    A("v_mov_b32 v248, -1\nv_mov_b32 v249, -1\nv_mov_b32 v250, -1\nv_mov_b32 v251, -1\nv_mov_b32 v252, 0\nv_mov_b32 v253, 0x%x" % L_CNT)
    A("ds_write_b32 v253, v252")
    G.vm("buffer_store_dword v248, v12, %s, s74 offen %s" % (srd('WS'), SC), "CLR", throttle=False)
    G.vm("buffer_store_dwordx4 v[248:251], v13, %s, s75 offen %s" % (srd('WS'), SC), "CLR", throttle=False)
    A("s_mov_b64 exec, 0xff")
    G.vm("buffer_store_dwordx2 v[248:249], v14, %s, s76 offen %s" % (srd('WS'), SC), "CLR", throttle=False)
    A("s_mov_b64 exec, -1")
    C("LDS addresses: transpose-read v8, q-reduce write v9, q-reduce read v10")
    A("v_lshrrev_b32 v8, 2, v5\nv_lshl_add_u32 v8, v6, 3, v8\nv_lshlrev_b32 v8, 7, v8\nv_and_b32 v11, 3, v5\nv_lshl_add_u32 v8, v11, 3, v8\nv_add_u32 v8, s73, v8")
    A("s_mul_i32 s72, s3, 4352\nv_mul_u32_u24 v9, 272, v5\nv_lshl_add_u32 v9, v6, 4, v9\nv_add_u32 v9, s72, v9")
    A("s_mul_i32 s72, s3, 544\nv_lshrrev_b32 v11, 5, v1\nv_mul_u32_u24 v10, 272, v11\nv_and_b32 v15, 31, v1\nv_lshl_add_u32 v10, v15, 3, v10\nv_add_u32 v10, s72, v10")
    C("QP store v15 = (l>>5)*16384 + (l&31)*8 ; s78 = ks*256KiB + 2w*16KiB + cb*256")
    A("v_lshlrev_b32 v15, 3, v15\nv_lshl_add_u32 v15, v11, 14, v15")
    A("s_lshl_b32 s78, s67, 18\ns_lshl_b32 s72, s3, 15\ns_add_u32 s78, s78, s72\ns_lshl_b32 s72, s68, 8\ns_add_u32 s78, s78, s72")
    kload(0, B[0], 3, 8)
    o.depth = dsave
    C("---- q projection partial: [16 x 256] x [256 x 64] ----")
    G.wait_tag("WQ")
    G.stamp(2)
    F = S + 4
    for t in range(4):
        for hh in range(2):
            A("ds_read_b64_tr_b16 v[%d:%d], v8 offset:%d" % (F + 4 * t + 2 * hh, F + 4 * t + 2 * hh + 1, L_WQ + hh * 512 + t * 32))
    for t in range(4):
        A("s_waitcnt lgkmcnt(%d)" % (6 - 2 * t))
        A("v_mfma_f32_16x16x32_bf16 v[%d:%d], v[%d:%d], v[%d:%d], 0" % (ACC + 4 * t, ACC + 4 * t + 3, F + 4 * t, F + 4 * t + 3, S, S + 3))
    A("s_nop 7")
    for t in range(4):
        A("ds_write_b128 v9, v[%d:%d] offset:%d" % (ACC + 4 * t, ACC + 4 * t + 3, L_RED + t * 64))
    A("s_waitcnt lgkmcnt(0)\ns_barrier")
    R = ACC + 16
    for w in range(8):
        A("ds_read_b64 v[%d:%d], v10 offset:%d" % (R + 2 * w, R + 2 * w + 1, L_RED + w * 4352))
    def sum8(R):
        A("s_waitcnt lgkmcnt(4)")
        for k in range(2): A("v_add_f32 v%d, v%d, v%d\nv_add_f32 v%d, v%d, v%d" % (R + k, R + k, R + 2 + k, R + 4 + k, R + 4 + k, R + 6 + k))
        A("s_waitcnt lgkmcnt(0)")
        for k in range(2): A("v_add_f32 v%d, v%d, v%d\nv_add_f32 v%d, v%d, v%d" % (R + 8 + k, R + 8 + k, R + 10 + k, R + 12 + k, R + 12 + k, R + 14 + k))
        for k in range(2): A("v_add_f32 v%d, v%d, v%d\nv_add_f32 v%d, v%d, v%d" % (R + k, R + k, R + 4 + k, R + 8 + k, R + 8 + k, R + 12 + k))
        for k in range(2): A("v_add_f32 v%d, v%d, v%d" % (R + k, R + k, R + 8 + k))
    sum8(R)
    G.vm("buffer_store_dwordx2 v[%d:%d], v15, %s, s78 offen %s" % (R, R + 1, srd('WS'), SC), "QPS", throttle=False)
    kload(1, B[1])
    G.wait_tag("QPS")
    C("arrival: the last wave of the workgroup adds to the launch-wide counter; the last workgroup raises the go flag")
    A("v_mov_b32 v252, 1\nv_mov_b32 v255, 0\ns_mov_b64 exec, 1\nds_add_rtn_u32 v254, v253, v252\ns_waitcnt lgkmcnt(0)\nv_readfirstlane_b32 s72, v254")
    A("s_cmp_lg_u32 s72, 7\ns_cbranch_scc1 L_noarr")
    A("v_mov_b32 v255, 1\nbuffer_atomic_add v255, off, %s, 0 sc0 sc1" % srd('DBG'))
    A("L_noarr:\ns_mov_b64 exec, -1")
    G.stamp(3)
    G.ops.append("ARR")
    n0 = min(o.depth, 8)
    G.ops.pop()
    kload(2, B[2], 0, n0)
    A("s_waitcnt vmcnt(%d)" % n0 if n0 < o.depth else "s_nop 0")
    A("v_readfirstlane_b32 s72, v255\ns_cmp_lg_u32 s72, 255\ns_cbranch_scc1 L_nogo")
    A("s_mov_b64 exec, 1\nbuffer_store_dword v252, off, %s, 0 offset:128 sc1\ns_mov_b64 exec, -1" % srd('DBG'))
    A("L_nogo:")
    kload(2, B[2], n0, 8)
    kload(3, B[3], 0, o.pollat)
    G.vm("buffer_load_dword v254, off, %s, 0 offset:128 sc1" % srd('DBG'), "POLL")
    kload(3, B[3], o.pollat, 8)
    vload(0, B[4], 0, o.pollat)
    G.wait_tag("POLL")
    A("s_mov_b32 s72, 0")
    A("L_poll0:\nv_cmp_ne_u32 vcc, 1, v254\ns_cbranch_vccz L_poll0_done")
    A("s_add_u32 s72, s72, 1\ns_cmp_gt_u32 s72, %d\ns_cbranch_scc1 L_poll0_done" % o.spin)
    A("s_sleep 4\nbuffer_load_dword v254, off, %s, 0 offset:128 sc1\ns_waitcnt vmcnt(0)\ns_branch L_poll0" % srd('DBG'))
    A("L_poll0_done:")
    G.stamp(4)
    C("gather q for head w of this group: 4 K-split partials")
    A("s_lshr_b32 s72, s62, 2\ns_lshl_b32 s79, s72, 14\ns_and_b32 s72, s62, 3\ns_lshl_b32 s72, s72, 12\ns_add_u32 s79, s79, s72\ns_lshl_b32 s72, s3, 9\ns_add_u32 s79, s79, s72")
    for ks in range(4):
        G.vm("buffer_load_dwordx2 v[%d:%d], v14, %s, s79 offen sc1" % (S + 2 * ks, S + 2 * ks + 1, srd('WS')), "QPL", throttle=False)
        if ks < 3: A("s_add_u32 s79, s79, 0x40000")
    vload(0, B[4], o.pollat, 8)
    G.wait_tag("QPL")
    A("v_add_f32 v%d, v%d, v%d\nv_add_f32 v%d, v%d, v%d\nv_add_f32 v%d, v%d, v%d\nv_add_f32 v%d, v%d, v%d" % (S, S, S + 2, S + 1, S + 1, S + 3, S + 4, S + 4, S + 6, S + 5, S + 5, S + 7))
    A("v_add_f32 v%d, v%d, v%d\nv_add_f32 v%d, v%d, v%d" % (S, S, S + 4, S + 1, S + 1, S + 5))
    A("s_mul_i32 s72, s3, 272\nv_add_u32 v11, s72, v12\nv_cvt_pk_bf16_f32 v%d, v%d, v%d" % (S, S, S + 1))
    A("ds_write_b32 v11, v%d offset:%d" % (S, L_Q))
    A("v_and_b32 v11, 7, v5\nv_mul_u32_u24 v11, 272, v11\nv_lshrrev_b32 v4, 3, v5\nv_lshl_add_u32 v4, v6, 1, v4\nv_lshl_add_u32 v11, v4, 4, v11")
    A("s_waitcnt lgkmcnt(0)\ns_barrier")
    A("ds_read_b128 v[%d:%d], v11 offset:%d\nds_read_b128 v[%d:%d], v11 offset:%d" % (Q, Q + 3, L_Q, Q + 4, Q + 7, L_Q + 128))
    A("s_waitcnt lgkmcnt(0)")
    C("---- scores ----")
    G.wait_tag("K3")
    def qk(u):
        D = ACC + 16 * (u & 1)
        for gu in range(4):
            k0 = B[u] + 8 * gu
            A("v_mfma_f32_16x16x32_bf16 v[%d:%d], v[%d:%d], v[%d:%d], 0" % (D + 4 * gu, D + 4 * gu + 3, k0, k0 + 3, Q, Q + 3))
        for gu in range(4):
            k0 = B[u] + 8 * gu + 4
            A("v_mfma_f32_16x16x32_bf16 v[%d:%d], v[%d:%d], v[%d:%d], v[%d:%d]" % (D + 4 * gu, D + 4 * gu + 3, k0, k0 + 3, Q + 4, Q + 7, D + 4 * gu, D + 4 * gu + 3))
    def qkred(u):
        D = ACC + 16 * (u & 1)
        for gu in range(4):
            for t in range(2):
                A("v_add_f32_dpp v%d, v%d, v%d row_ror:8 row_mask:0xf bank_mask:0xf" % (S + 8 * u + 2 * gu + t, D + 4 * gu + 2 * t + 1, D + 4 * gu + 2 * t))
    qk(0); qk(1); qkred(0); qk(2); qkred(1); qk(3); qkred(2)
    vload(1, B[0], 0, 4)
    qkred(3)
    G.stamp(5)
    C("wave max per head")
    M, M2 = 248, 249
    A("v_max3_f32 v%d, v%d, v%d, v%d" % (M, S, S + 1, S + 2))
    A("v_max3_f32 v%d, v%d, v%d, v%d" % (M2, S + 3, S + 4, S + 5))
    i = 6
    while i + 3 < 32:
        A("v_max3_f32 v%d, v%d, v%d, v%d\nv_max3_f32 v%d, v%d, v%d, v%d" % (M, M, S + i, S + i + 1, M2, M2, S + i + 2, S + i + 3)); i += 4
    A("v_max3_f32 v%d, v%d, v%d, v%d" % (M, M, S + 30, S + 31))
    A("v_max_f32 v%d, v%d, v%d" % (M, M, M2))
    def xred(op, r, tmp, x8=False):
        if x8:
            A("s_nop 1\n%s_dpp v%d, v%d, v%d row_ror:8 row_mask:0xf bank_mask:0xf" % (op, r, r, r))
        for sw in ("v_permlane16_swap_b32", "v_permlane32_swap_b32"):
            A("v_mov_b32 v%d, v%d\ns_nop 1\n%s v%d, v%d\ns_nop 1\n%s v%d, v%d, v%d" % (tmp, r, sw, r, tmp, op, r, r, tmp))
    xred("v_max_f32", M, M2)
    c = math.log2(math.e) / math.sqrt(128.0)
    import struct
    cbits = struct.unpack("<I", struct.pack("<f", c))[0]
    A("s_mov_b32 s72, 0x%08x\nv_mul_f32 v%d, s72, v%d" % (cbits, M, M))
    vload(1, B[0], 4, 8)
    for i in range(32): A("v_fma_f32 v%d, v%d, s72, -v%d" % (S + i, S + i, M))
    for i in range(32): A("v_exp_f32 v%d, v%d" % (S + i, S + i))
    Lr = 249
    A("v_add_f32 v%d, v%d, v%d\nv_add_f32 v250, v%d, v%d" % (Lr, S, S + 1, S + 2, S + 3))
    for i in range(4, 32, 2): A("v_add_f32 v%d, v%d, v%d\nv_add_f32 v250, v250, v%d" % (Lr, Lr, S + i, S + i + 1))
    A("v_add_f32 v%d, v%d, v250" % (Lr, Lr))
    xred("v_add_f32", Lr, 250)
    A("s_mov_b64 exec, 0xff")
    G.vm("buffer_store_dwordx2 v[248:249], v14, %s, s76 offen %s" % (srd('WS'), SC), "MLS", throttle=False)
    A("s_mov_b64 exec, -1")
    C("wo DMA voffset v7, soffset s66")
    A("v_lshrrev_b32 v4, 5, v1\nv_lshlrev_b32 v4, 16, v4\nv_bfe_u32 v7, v1, 3, 2\nv_lshl_add_u32 v4, v7, 14, v4\nv_and_b32 v7, 7, v1\nv_lshl_add_u32 v7, v7, 4, v4")
    A("s_lshl_b32 s66, s64, 18\ns_and_b32 s67, s3, 3\ns_lshl_b32 s72, s67, 12\ns_add_u32 s66, s66, s72\ns_lshl_b32 s72, s65, 8\ns_add_u32 s66, s66, s72\ns_lshr_b32 s68, s3, 2\ns_lshl_b32 s72, s68, 7\ns_add_u32 s66, s66, s72")
    def woload():
        for k in range(4):
            A("s_add_u32 m0, s73, %d\ns_add_u32 s72, s66, %d" % (L_WO + k * 1024, (64 * (k & 1) + (k >> 1)) * 2048))
            G.vm("buffer_load_dwordx4 v7, %s, s72 offen %s lds" % (srd('WO'), NT), "WO")
    def mlload(thr):
        for i in range(4):
            t = "buffer_load_dwordx2 v[%d:%d], v14, %s, s77 offen offset:%d sc1" % (T + 2 * i, T + 2 * i + 1, srd('WS'), i * 512)
            if thr: G.vm(t, "MLL", throttle=False)
            else: A(t)
    vload(2, B[1])
    if o.wo == "mid": woload()
    mlload(True)
    vload(3, B[2])
    if o.wo == "last": woload()
    G.wait_tag("MLL")
    A("s_mov_b32 s72, 0")
    A("L_poll1:")
    A("v_cmp_eq_u32 vcc, -1, v%d" % (T + 1))
    for i in range(1, 4): A("v_cmp_eq_u32 s[70:71], -1, v%d\ns_or_b64 vcc, vcc, s[70:71]" % (T + 2 * i + 1))
    for i in range(0, 4): A("v_cmp_eq_u32 s[70:71], -1, v%d\ns_or_b64 vcc, vcc, s[70:71]" % (T + 2 * i))
    A("s_cbranch_vccz L_poll1_done")
    A("s_add_u32 s72, s72, 1\ns_cmp_gt_u32 s72, %d\ns_cbranch_scc1 L_poll1_done\ns_sleep 2" % o.spin)
    mlload(False)
    A("s_waitcnt vmcnt(0)\ns_branch L_poll1\nL_poll1_done:")
    C("global max / sum over the 32 waves that share this (batch, kv head)")
    A("v_max3_f32 v250, v%d, v%d, v%d\nv_max_f32 v250, v250, v%d" % (T, T + 2, T + 4, T + 6))
    xred("v_max_f32", 250, 251, x8=True)
    for i in range(4): A("v_sub_f32 v%d, v%d, v250" % (T + 2 * i, T + 2 * i))
    A("v_sub_f32 v248, v248, v250")
    for i in range(4): A("v_exp_f32 v%d, v%d" % (T + 2 * i, T + 2 * i))
    A("v_exp_f32 v248, v248")
    A("v_mul_f32 v251, v%d, v%d" % (T, T + 1))
    for i in range(1, 4): A("v_fmac_f32 v251, v%d, v%d" % (T + 2 * i, T + 2 * i + 1))
    xred("v_add_f32", 251, 250, x8=True)
    A("v_rcp_f32 v251, v251\ns_nop 0\nv_mul_f32 v248, v248, v251")
    for i in range(32): A("v_mul_f32 v%d, v248, v%d" % (S + i, S + i))
    for i in range(16): A("v_cvt_pk_bf16_f32 v%d, v%d, v%d" % (P + i, S + 2 * i, S + 2 * i + 1))
    G.stamp(6)
    C("---- O^T += V^T P^T ----")
    def pv(u, buf, first):
        G.wait_tag("V%d" % u)
        def perms(j):
            t0 = T + 4 * (j & 3)
            for i in range(4):
                A("v_perm_b32 v%d, v%d, v%d, s%d" % (t0 + i, buf + 4 * (2 * i + 1) + (j >> 1), buf + 4 * (2 * i) + (j >> 1), 60 + (j & 1)))
        def mf(j):
            t0 = T + 4 * (j & 3)
            cs = "0" if first else "v[%d:%d]" % (ACC + 4 * j, ACC + 4 * j + 3)
            A("v_mfma_f32_16x16x32_bf16 v[%d:%d], v[%d:%d], v[%d:%d], %s" % (ACC + 4 * j, ACC + 4 * j + 3, t0, t0 + 3, P + 4 * u, P + 4 * u + 3, cs))
        perms(0)
        for j in range(8):
            if j < 7: perms(j + 1)
            else: A("s_nop 1")
            mf(j)
    C("LDS addresses for the tail: o-reduce write v9, read v10")
    A("s_mul_i32 s72, s3, 4352\nv_mul_u32_u24 v9, 528, v5\nv_lshl_add_u32 v9, v6, 4, v9\nv_add_u32 v9, s72, v9")
    A("s_mul_i32 s72, s3, 528\nv_add_u32 v10, s72, v14")
    C("OP load v11 (+s79); out-reduce write v4, read v15")
    A("v_lshlrev_b32 v11, 4, v6\nv_lshl_add_u32 v11, v5, 8, v11\ns_lshl_b32 s79, s64, 14\ns_lshl_b32 s72, s67, 6\ns_add_u32 s79, s79, s72\ns_add_u32 s79, s79, 0x%x" % OP_OFF)
    A("s_add_u32 s69, s79, 0x2000")
    A("v_add_u32 v4, s73, v3\ns_lshl_b32 s72, s68, 14\ns_lshl_b32 s70, s67, 10\ns_add_u32 s72, s72, s70\nv_add_u32 v15, s72, v3")
    pv(0, B[4], True); pv(1, B[0], False); pv(2, B[1], False)
    WF = B[4]
    def woread():
        G.wait_tag("WO")
        for t in range(4):
            for hh in range(2):
                A("ds_read_b64_tr_b16 v[%d:%d], v8 offset:%d" % (WF + 4 * t + 2 * hh, WF + 4 * t + 2 * hh + 1, L_WO + hh * 512 + t * 32))
    if o.wo == "mid": woread()
    pv(3, B[2], False)
    G.stamp(7)
    A("s_mov_b32 exec_lo, 0x00ff00ff\ns_mov_b32 exec_hi, 0x00ff00ff")
    for j in range(8):
        if j == 7: A("s_nop 0")
        A("ds_write_b128 v9, v[%d:%d] offset:%d" % (ACC + 4 * j, ACC + 4 * j + 3, L_RED + j * 64))
    A("s_mov_b64 exec, -1\ns_waitcnt lgkmcnt(0)\ns_barrier")
    R = S
    for w in range(8):
        A("ds_read_b64 v[%d:%d], v10 offset:%d" % (R + 2 * w, R + 2 * w + 1, L_RED + w * 4352))
    sum8(R)
    A("v_cvt_pk_bf16_f32 v%d, v%d, v%d" % (R, R, R + 1))
    G.vm("buffer_store_dword v%d, v12, %s, s74 offen %s" % (R, srd('WS'), SC), "OPS", throttle=False)
    if o.wo == "last": woread()
    C("---- output projection, stage 1: head h, 128 columns ----")
    OF = B[0]
    A("s_mov_b32 s72, 0")
    A("L_poll2:")
    for s_ in range(4):
        A("buffer_load_dwordx4 v[%d:%d], v11, %s, s%d offen offset:%d sc1" % (OF + 4 * s_, OF + 4 * s_ + 3, srd('WS'), 79 if s_ < 2 else 69, 0) if False else
          "buffer_load_dwordx4 v[%d:%d], v11, %s, s%d offen sc1" % (OF + 4 * s_, OF + 4 * s_ + 3, srd('WS'), 79) + ("\ns_add_u32 s79, s79, 0x1000" if s_ < 3 else "\ns_sub_u32 s79, s79, 0x3000"))
    A("s_waitcnt vmcnt(0)")
    def allvalid(base, n, tmp):
        A("v_max3_u32 v%d, v%d, v%d, v%d" % (tmp, base, base + 1, base + 2))
        A("v_max3_u32 v%d, v%d, v%d, v%d" % (tmp + 1, base + 3, base + 4, base + 5))
        i = 6
        while i + 3 < n:
            A("v_max3_u32 v%d, v%d, v%d, v%d\nv_max3_u32 v%d, v%d, v%d, v%d" % (tmp, tmp, base + i, base + i + 1, tmp + 1, tmp + 1, base + i + 2, base + i + 3)); i += 4
        A("v_max3_u32 v%d, v%d, v%d, v%d" % (tmp, tmp, base + n - 2, base + n - 1))
        A("v_max_u32 v%d, v%d, v%d\nv_cmp_eq_u32 vcc, -1, v%d" % (tmp, tmp, tmp + 1, tmp))
    allvalid(OF, 16, 250)
    A("s_cbranch_vccz L_poll2_done")
    A("s_add_u32 s72, s72, 1\ns_cmp_gt_u32 s72, %d\ns_cbranch_scc1 L_poll2_done" % o.spin)
    if o.sleep2: A("s_sleep %d" % o.sleep2)
    A("s_branch L_poll2\nL_poll2_done:")
    G.ops = []
    if o.stamps: A("s_memrealtime s[96:97]")
    A("s_waitcnt lgkmcnt(0)")
    for s_ in range(4):
        for t in range(4):
            cs = "0" if s_ == 0 else "v[%d:%d]" % (ACC + 4 * t, ACC + 4 * t + 3)
            A("v_mfma_f32_16x16x32_bf16 v[%d:%d], v[%d:%d], v[%d:%d], %s" % (ACC + 4 * t, ACC + 4 * t + 3, WF + 4 * t, WF + 4 * t + 3, OF + 4 * s_, OF + 4 * s_ + 3, cs))
    A("s_nop 4")
    for t in range(4):
        A("ds_write_b128 v4, v[%d:%d] offset:%d" % (ACC + 4 * t, ACC + 4 * t + 3, L_RED2 + t * 1024))
        if t < 3: A("s_nop 0")
    A("s_waitcnt lgkmcnt(0)\ns_barrier")
    for j in range(4):
        A("ds_read_b128 v[%d:%d], v15 offset:%d" % (S + 4 * j, S + 4 * j + 3, L_RED2 + j * 4096))
    A("s_waitcnt lgkmcnt(2)")
    for k in range(4): A("v_add_f32 v%d, v%d, v%d" % (S + k, S + k, S + 4 + k))
    A("s_waitcnt lgkmcnt(0)")
    for k in range(4): A("v_add_f32 v%d, v%d, v%d" % (S + 8 + k, S + 8 + k, S + 12 + k))
    for k in range(4): A("v_add_f32 v%d, v%d, v%d" % (S + k, S + k, S + 8 + k))
    A("buffer_store_dwordx4 v[%d:%d], v13, %s, s75 offen %s" % (S, S + 3, srd('WS'), SC))
    A("s_cmp_lg_u32 s3, 0\ns_cbranch_scc1 L_end")
    C("---- stage 2 (wave 0): sum the 32 heads for 4 batches x 16 columns ----")
    A("s_lshl_b32 s79, s2, 13\ns_add_u32 s79, s79, 0x%x\ns_add_u32 s69, s79, 0x1000" % PO_OFF)
    A("s_and_b32 s70, s2, 3\ns_lshl_b32 s70, s70, 13\ns_lshr_b32 s71, s2, 2\ns_lshl_b32 s71, s71, 5\ns_add_u32 s70, s70, s71")
    A("v_lshrrev_b32 v4, 2, v5\nv_lshlrev_b32 v4, 11, v4\nv_and_b32 v7, 3, v5\nv_lshl_add_u32 v4, v7, 3, v4")
    FB = B[1]
    A("s_mov_b32 s72, 0\nL_poll3:")
    for k in range(8):
        A("buffer_load_dwordx4 v[%d:%d], v3, %s, s%d offen offset:%d sc1" % (FB + 4 * k, FB + 4 * k + 3, srd('WS'), 79 if k < 4 else 69, (k & 3) * 1024))
    A("s_waitcnt vmcnt(0)")
    allvalid(FB, 32, 250)
    A("s_cbranch_vccz L_poll3_done")
    A("s_add_u32 s72, s72, 1\ns_cmp_gt_u32 s72, %d\ns_cbranch_scc1 L_poll3_done" % o.spin)
    A("s_branch L_poll3\nL_poll3_done:")
    if o.stamps: A("s_memrealtime s[98:99]")
    for st in (16, 8, 4):
        for k in range(st): A("v_add_f32 v%d, v%d, v%d" % (FB + k, FB + k, FB + st + k))
    for sw in ("v_permlane16_swap_b32", "v_permlane32_swap_b32"):
        for k in range(4): A("v_mov_b32 v%d, v%d" % (FB + 4 + k, FB + k))
        A("s_nop 0")
        for k in range(4): A("%s v%d, v%d" % (sw, FB + k, FB + 4 + k))
        A("s_nop 0")
        for k in range(4): A("v_add_f32 v%d, v%d, v%d" % (FB + k, FB + k, FB + 4 + k))
    A("v_cvt_pk_bf16_f32 v%d, v%d, v%d\nv_cvt_pk_bf16_f32 v%d, v%d, v%d" % (FB, FB, FB + 1, FB + 1, FB + 2, FB + 3))
    A("s_mov_b64 exec, 0xffff")
    A("buffer_store_dwordx2 v[%d:%d], v4, %s, s70 offen %s" % (FB, FB + 1, srd('OUT'), o.outsc))
    if o.probe >= 0:
        A("s_waitcnt vmcnt(0)\ns_memrealtime s[82:83]\ns_waitcnt lgkmcnt(0)")
        A("s_add_u32 s70, s%d, 6000" % (80 + 2 * o.probe))
        A("L_probe:\ns_memrealtime s[100:101]\ns_waitcnt lgkmcnt(0)\ns_sub_u32 s71, s70, s100\ns_cmp_gt_i32 s71, 0\ns_cbranch_scc1 L_probe")
    elif o.stamps:
        A("s_waitcnt vmcnt(0)\ns_memrealtime s[82:83]\ns_waitcnt lgkmcnt(0)\ns_mov_b64 exec, 1")
        A("s_lshl_b32 s72, s2, 7\ns_add_u32 s72, s72, 0x%x" % STAMP_OFF)
        A("s_getreg_b32 s100, hwreg(HW_REG_XCC_ID)\ns_mov_b32 s101, 0")
        for j in range(22): A("v_mov_b32 v%d, s%d" % (16 + j, 80 + j))
        for j in range(5): A("buffer_store_dwordx4 v[%d:%d], off, %s, s72 offset:%d" % (16 + 4 * j, 19 + 4 * j, srd('WS'), 16 * j))
        A("buffer_store_dwordx2 v[36:37], off, %s, s72 offset:120" % srd('WS'))
    A("L_end:\ns_endpgm")
    out = HEADER + "; @launch grid=(256,1,1) block=(512,1,1) lds=%d\n" % LDS_BYTES
    out += '.amdgcn_target "amdgcn-amd-amdhsa--gfx950"\n.text\n.globl %s\n.p2align 8\n.type %s,@function\n%s:\n' % (KN, KN, KN)
    out += "\n".join(G.L) + "\n"
    out += '.section .rodata,"a"\n.p2align 6\n.amdhsa_kernel %s\n  .amdhsa_next_free_vgpr 256\n  .amdhsa_next_free_sgpr 102\n  .amdhsa_accum_offset 256\n  .amdhsa_group_segment_fixed_size 0\n  .amdhsa_kernarg_size 64\n  .amdhsa_user_sgpr_count 2\n  .amdhsa_user_sgpr_kernarg_segment_ptr 1\n  .amdhsa_system_sgpr_workgroup_id_x 1\n  .amdhsa_float_denorm_mode_32 3\n.end_amdhsa_kernel\n' % KN
    return out

def parse(argv):
    ap = argparse.ArgumentParser()
    ap.add_argument("-o", default="/dev/stdout")
    ap.add_argument("--depth", type=int, default=8)
    ap.add_argument("--pre", type=int, default=16)
    ap.add_argument("--nt", type=int, default=1)
    ap.add_argument("--sc", default="sc1")
    ap.add_argument("--outsc", default="")
    ap.add_argument("--map", default="adj")
    ap.add_argument("--wo", default="last")
    ap.add_argument("--spin", type=int, default=200000)
    ap.add_argument("--sleep2", type=int, default=0)
    ap.add_argument("--pollat", type=int, default=0)
    ap.add_argument("--probe", type=int, default=-1)
    ap.add_argument("--stamps", type=int, default=0)
    return ap.parse_args(argv)

if __name__ == "__main__":
    o = parse(sys.argv[1:])
    open(o.o, "w").write(gen(o))
```
